```python
import torch

def _softmax(x, axis=-1):
    return torch.softmax(x, dim=axis)

def _gelu(x):
    return torch.nn.functional.gelu(x, approximate='tanh')

def _silu(x):
    return torch.nn.functional.silu(x)

def _sigmoid(x):
    return torch.sigmoid(x)

def _layernorm(x, axis=-1, eps=1e-05):
    m = x.mean(dim=axis, keepdim=True)
    v = x.var(dim=axis, keepdim=True, unbiased=False)
    return (x - m) / torch.sqrt(v + eps)

def _scatter_add(tgt, idx, src, axis=0):
    return tgt.clone().index_add_(axis, idx, src)

def _segment_sum(src, seg, n):
    out = torch.zeros((n,) + src.shape[1:], dtype=src.dtype)
    return out.index_add_(0, seg, src)

def _pad(x, pw):
    flat = tuple((v for pair in reversed(pw) for v in pair))
    return torch.nn.functional.pad(x, flat)
kernel_name = 'standalone__molecular_angular_painn__graph'

def setup_inputs():

    _w = lambda a: (lambda t: t.to(torch.bfloat16) if t.is_floating_point() else t)(torch.as_tensor(a))
    N, deg, D = (25000, 32, 64)
    n_rbf = max(16, 4)
    E = N * deg
    cutoff = 5.0
    freqs = (torch.arange(1, n_rbf + 1) * torch.pi / cutoff).to(float)
    return {'sv': _w((lambda *s: torch.randn(*s, dtype=torch.bfloat16) * 0.4)(N, 4, D) * 0.3), 'pos': _w((lambda *s: torch.randn(*s, dtype=torch.bfloat16) * 1.6)(N, 3) * 1.2), 'src': _w((lambda lo, hi, *s: torch.randint(lo, hi, s))(0, N, E).to(torch.int64)), 'dst': _w((lambda lo, hi, *s: torch.randint(lo, hi, s))(0, N, E).to(torch.int64)), 'freqs': _w(freqs), 'w_phi1': _w((lambda *s: torch.randn(*s, dtype=torch.bfloat16) * 3.2)(D, D) / D ** 0.5), 'w_phi2': _w((lambda *s: torch.randn(*s, dtype=torch.bfloat16) * 1.6)(D, 3 * D) / D ** 0.5), 'w_rbf': _w((lambda *s: torch.randn(*s, dtype=torch.bfloat16) * 1.6)(n_rbf, 3 * D) / n_rbf ** 0.5)}

def reference(sv, pos, src, dst, freqs, w_phi1, w_phi2, w_rbf):
    N, _, D = sv.shape
    E = src.shape[0]
    PI, cutoff = (3.141592653589793, 5.0)
    s, v = (sv[:, 0, :].clone(), sv[:, 1:, :].clone())
    r_vec = pos[src] - pos[dst]
    d = torch.sqrt((r_vec * r_vec).sum(-1) + 1e-08)
    r_hat = r_vec / d[:, None]
    rbf = torch.sin(d[:, None] * freqs[None, :]) / d[:, None]
    fcut = 0.5 * (torch.cos(PI * d / cutoff) + 1.0)
    fcut = torch.where(d < cutoff, fcut, 0.0 * d)
    Wf = rbf @ w_rbf * fcut[:, None]
    phi = (_silu(s @ w_phi1) @ w_phi2)[src]
    m = phi * Wf
    m_s, m_vv, m_vr = (m[:, :D].clone(), m[:, D:2 * D].clone(), m[:, 2 * D:].clone())
    ds = _segment_sum(m_s, dst, N)
    dv_e = m_vv[:, None, :] * v[src] + m_vr[:, None, :] * r_hat[:, :, None]
    dv = _segment_sum(dv_e.reshape(E, 3 * D), dst, N).reshape(N, 3, D)
    return sv + torch.concatenate([ds[:, None, :], dv], axis=1)
```

```python
import re

TRANS = ('v_exp_f32', 'v_log_f32', 'v_rcp_f32', 'v_rsq_f32', 'v_sqrt_f32', 'v_sin_f32', 'v_cos_f32')
_reg_re = re.compile(r'^(-|abs\()?([vas])(\d+)\)?$')
_rng_re = re.compile(r'^([vas])\[(\d+):(\d+)\]$')


def regs_of(tok):
    tok = tok.strip()
    m = _reg_re.match(tok)
    if m:
        return [m.group(2) + m.group(3)]
    m = _rng_re.match(tok)
    if m:
        return [m.group(1) + str(i) for i in range(int(m.group(2)), int(m.group(3)) + 1)]
    if tok == 'vcc':
        return ['vcc']
    if tok == 'exec':
        return ['exec']
    if tok == 'm0':
        return ['m0']
    return []


def split_ops(s):
    out, depth, cur = [], 0, ''
    for ch in s:
        if ch in '[(':
            depth += 1
        if ch in '])':
            depth -= 1
        if ch == ',' and depth == 0:
            out.append(cur.strip())
            cur = ''
        else:
            cur += ch
    if cur.strip():
        out.append(cur.strip())
    return out


class Ins:
    __slots__ = ('text', 'op', 'kind', 'w', 'r', 'srcc', 'ab', 'states', 'dpp', 'wide_store', 'lds_dma', 'lanesel')


class Asm:
    def __init__(self):
        self.lines = []
        self.hist = []
        self.nops = 0
        self.count = 0
        self.maxv = -1
        self.maxa = -1
        self.maxs = -1

    def raw(self, text):
        self.lines.append(text)

    def comment(self, text):
        self.lines.append('    ; ' + text)

    def _parse(self, text):
        t = text.strip()
        parts = t.split(None, 1)
        op = parts[0]
        rest = parts[1] if len(parts) > 1 else ''
        ops = split_ops(rest)
        mods = ''
        if ops:
            last = ops[-1].split(None, 1)
            if len(last) > 1 and not op.startswith('s_waitcnt'):
                ops[-1] = last[0]
                mods = last[1]
        ins = Ins()
        ins.text = t
        ins.op = op
        ins.w, ins.r = set(), set()
        ins.srcc, ins.ab = set(), set()
        ins.states = 1
        ins.dpp = '_dpp' in op
        ins.wide_store = False
        ins.lds_dma = False
        ins.lanesel = set()
        R = [regs_of(o) for o in ops]
        if op.startswith('v_mfma') or op.startswith('v_smfmac'):
            ins.kind = 'mfma'
            ins.w.update(R[0])
            ins.ab.update(R[1]); ins.ab.update(R[2])
            if op.startswith('v_smfmac'):
                ins.ab.update(R[3]); ins.srcc.update(R[0])
            else:
                ins.srcc.update(R[3])
            ins.r.update(ins.ab); ins.r.update(ins.srcc)
        elif op.startswith('v_'):
            ins.kind = 'trans' if op.replace('_e32', '').replace('_e64', '') in TRANS else 'valu'
            if op.startswith('v_permlane') and 'swap' in op:
                ins.w.update(R[0]); ins.w.update(R[1]); ins.r.update(R[0]); ins.r.update(R[1])
            else:
                ins.w.update(R[0])
                for x in R[1:]:
                    ins.r.update(x)
                if op.startswith('v_fmac') or ins.dpp or op.startswith('v_writelane') or op.startswith('v_dot2c'):
                    ins.r.update(R[0])
                if op.startswith('v_cmpx'):
                    ins.w.add('exec')
                if op.startswith('v_readlane') or op.startswith('v_writelane'):
                    ins.lanesel.update(R[2])
                if op.startswith('v_add_co') or op.startswith('v_sub_co') or op.startswith('v_addc_co'):
                    ins.w.update(R[1])
        elif op.startswith('ds_'):
            ins.kind = 'ds'
            if op.startswith('ds_read') or '_rtn' in op or op.startswith('ds_bpermute') or op.startswith('ds_swizzle'):
                ins.w.update(R[0])
                for x in R[1:]:
                    ins.r.update(x)
                if 'd16' in op:
                    ins.r.update(R[0])
            else:
                for x in R:
                    ins.r.update(x)
        elif op.startswith('buffer_') or op.startswith('global_'):
            ins.kind = 'vmem'
            if 'load' in op and (' lds' in (' ' + mods) or '_lds_' in op):
                ins.lds_dma = True
                for x in R:
                    ins.r.update(x)
                ins.r.add('m0')
            elif 'load' in op:
                ins.w.update(R[0])
                for x in R[1:]:
                    ins.r.update(x)
            else:
                for x in R:
                    ins.r.update(x)
                if 'x3' in op or 'x4' in op:
                    ins.wide_store = True
                    ins.srcc = set(R[0] if op.startswith('buffer_') else R[1])
                if 'atomic' in op and 'sc0' in mods:
                    ins.w.update(R[0])
        elif op.startswith('s_'):
            ins.kind = 'salu'
            if op == 's_nop':
                ins.states = int(ops[0], 0) + 1
            elif op.startswith(('s_cmp', 's_cbranch', 's_branch', 's_waitcnt', 's_barrier', 's_endpgm', 's_setprio', 's_sleep', 's_bitcmp')):
                for x in R:
                    ins.r.update(x)
            else:
                ins.w.update(R[0])
                for x in R[1:]:
                    ins.r.update(x)
                if 'saveexec' in op:
                    ins.w.add('exec'); ins.r.add('exec')
        else:
            raise ValueError('unknown op ' + op)
        for x in ins.w | ins.r:
            if x[0] == 'v' and x != 'vcc':
                self.maxv = max(self.maxv, int(x[1:]))
            elif x[0] == 'a':
                self.maxa = max(self.maxa, int(x[1:]))
            elif x[0] == 's':
                self.maxs = max(self.maxs, int(x[1:]))
        return ins

    @staticmethod
    def _need(p, c):
        n = 0
        pv = p.kind in ('valu', 'trans')
        cv = c.kind in ('valu', 'trans')
        is_s = lambda x: x[0] == 's' or x == 'vcc'
        if pv:
            wv = {x for x in p.w if x[0] in 'va' and x != 'vcc'}
            ws = {x for x in p.w if is_s(x)}
            if c.kind == 'mfma' and wv & c.r:
                n = max(n, 2)
            if c.kind == 'mfma' and 'exec' in p.w:
                n = max(n, 4)
            if cv and c.dpp and wv & c.r:
                n = max(n, 2)
            if cv and c.dpp and 'exec' in p.w:
                n = max(n, 5)
            if cv and c.op.startswith(('v_readlane', 'v_readfirstlane')) and wv & c.r:
                n = max(n, 1)
            if cv and c.op.startswith('v_permlane') and wv & c.r:
                n = max(n, 2)
            if cv and ws & c.r:
                n = max(n, 2)
            if cv and ws & c.lanesel:
                n = max(n, 4)
            if c.kind == 'vmem' and ws & c.r:
                n = max(n, 5)
            if c.kind == 'salu' and ws & c.r:
                n = max(n, 1)
            if p.kind == 'trans' and c.kind in ('valu', 'mfma', 'ds', 'vmem') and wv & c.r:
                n = max(n, 1)
            if ('op_sel' in p.text or 'sdwa' in p.text) and cv and wv & (c.r | c.w):
                n = max(n, 1)
        if p.kind == 'mfma':
            if c.kind == 'mfma':
                if p.w & c.ab:
                    n = max(n, 8)
                if p.w & c.srcc and p.w != c.srcc:
                    n = max(n, 6)
                if p.w & c.w and not (p.w & c.srcc):
                    n = max(n, 8)
            elif cv:
                if p.w & (c.r | c.w):
                    n = max(n, 8)
                if p.srcc & c.w:
                    n = max(n, 3)
            elif c.kind in ('ds', 'vmem'):
                if p.w & (c.r | c.w):
                    n = max(n, 8)
        if p.kind == 'vmem' and p.wide_store and (p.srcc & c.w):
            n = max(n, 2)
        if p.kind == 'salu' and 'm0' in p.w and c.kind == 'vmem' and c.lds_dma:
            n = max(n, 1)
        return n

    def i(self, text):
        c = self._parse(text)
        need = 0
        dist = 0
        for p in reversed(self.hist):
            if dist >= 9:
                break
            n = self._need(p, c) - dist
            need = max(need, n)
            dist += p.states
        if need > 0:
            self._nop(need)
        self.hist.append(c)
        self.lines.append('    ' + c.text)
        self.count += 1

    def _nop(self, n):
        ins = self._parse('s_nop %d' % (n - 1))
        self.hist.append(ins)
        self.lines.append('    ' + ins.text)
        self.nops += n

    def flush(self):
        need = 0
        dist = 0
        for p in reversed(self.hist):
            if dist >= 9:
                break
            mx = 0
            if p.kind == 'mfma':
                mx = 8
            elif p.kind in ('valu', 'trans'):
                mx = 5 if any(x[0] == 's' or x in ('vcc', 'exec') for x in p.w) else 2
            elif p.kind == 'vmem' and p.wide_store:
                mx = 2
            elif p.kind == 'salu' and 'm0' in p.w:
                mx = 1
            need = max(need, mx - dist)
            dist += p.states
        if need > 0:
            self._nop(need)
        self.hist = []

    def label(self, name):
        self.flush()
        self.lines.append(name + ':')

    def branch(self, text):
        self.flush()
        self.i(text)
        self.hist = []

    def text(self):
        return '\n'.join(self.lines) + '\n'


def vr(a, n=1):
    return 'v%d' % a if n == 1 else 'v[%d:%d]' % (a, a + n - 1)


def ar(a, n=1):
    return 'a%d' % a if n == 1 else 'a[%d:%d]' % (a, a + n - 1)


def sr(a, n=1):
    return 's%d' % a if n == 1 else 's[%d:%d]' % (a, a + n - 1)
```

```python
import sys, struct
from asmlib import Asm, vr, ar, sr

NAME = 'standalone__molecular_angular_painn__graph'
N, E = 25000, 800000
TILE = 98
NTILE = 256
CH = 128
CHE = E // CH
NTW = 196
ROWB = 640
TAB_BYTES = N * ROWB
REC_OFF = 0x1000000
REC_STRIDE = 25088
OFFS_OFF = 0x1400000
WB_OFF = 0x1440000
STAMP_OFF = 0x1500000

OPT = dict(stamps=False, hitrick=False, tab_store='', rec_store='')
for a in sys.argv[1:]:
    if '=' in a:
        k, v = a.split('=')
        OPT[k] = v if k.endswith('_store') else bool(int(v))


def f32bits(x):
    return struct.unpack('<I', struct.pack('<f', x))[0]


def srd(A, d, lo, hi, size, off=0):
    if off:
        A.i('s_add_u32 %s, %s, 0x%x' % (sr(d), sr(lo), off))
        A.i('s_addc_u32 %s, %s, 0' % (sr(d + 1), sr(hi)))
        A.i('s_and_b32 %s, %s, 0xffff' % (sr(d + 1), sr(d + 1)))
    else:
        A.i('s_mov_b32 %s, %s' % (sr(d), sr(lo)))
        A.i('s_and_b32 %s, %s, 0xffff' % (sr(d + 1), sr(hi)))
    A.i('s_mov_b32 %s, 0x%x' % (sr(d + 2), size))
    A.i('s_mov_b32 %s, 0x20000' % sr(d + 3))


def wave_scan_add(A, x):
    for sh in (1, 2, 4, 8):
        A.i('v_add_u32_dpp %s, %s, %s row_shr:%d row_mask:0xf bank_mask:0xf' % (vr(x), vr(x), vr(x), sh))
    A.i('v_add_u32_dpp %s, %s, %s row_bcast:15 row_mask:0xa bank_mask:0xf' % (vr(x), vr(x), vr(x)))
    A.i('v_add_u32_dpp %s, %s, %s row_bcast:31 row_mask:0xc bank_mask:0xf' % (vr(x), vr(x), vr(x)))


def wave_scan_max(A, x):
    for sh in (1, 2, 4, 8):
        A.i('v_max_u32_dpp %s, %s, %s row_shr:%d row_mask:0xf bank_mask:0xf' % (vr(x), vr(x), vr(x), sh))
    A.i('v_max_u32_dpp %s, %s, %s row_bcast:15 row_mask:0xa bank_mask:0xf' % (vr(x), vr(x), vr(x)))
    A.i('v_max_u32_dpp %s, %s, %s row_bcast:31 row_mask:0xc bank_mask:0xf' % (vr(x), vr(x), vr(x)))


def rnd(A, d, s):
    A.i('v_cvt_pk_bf16_f32 %s, 0, %s' % (vr(d), vr(s)))


class Stamper:
    def __init__(self, A, base_s, kidx):
        self.A, self.b, self.k, self.n = A, base_s, kidx, 0

    def stamp(self):
        if not OPT['stamps']:
            return
        self.A.i('s_memrealtime %s' % sr(self.b + 2 * self.n, 2))
        self.n += 1

    def store(self, srd_s, ws_lo, tmpv, wave_s):
        if not OPT['stamps']:
            return
        A = self.A
        A.i('s_waitcnt lgkmcnt(0)')
        srd(A, srd_s, ws_lo, ws_lo + 1, 0x100000, STAMP_OFF + self.k * 0x80000)
        A.i('s_lshl_b32 %s, %s, 6' % (sr(wave_s), sr(wave_s)))
        A.i('v_mov_b32 %s, %s' % (vr(tmpv + 1), sr(wave_s)))
        for j in range(self.n):
            A.i('v_mov_b32 %s, %s' % (vr(tmpv), sr(self.b + 2 * j)))
            A.i('buffer_store_dword %s, %s, %s, 0 offen offset:%d' % (vr(tmpv), vr(tmpv + 1), sr(srd_s, 4), 4 * j))


K1_LDS = 34816


def gen_k1():
    A = Asm()
    ST = Stamper(A, 64, 0)
    ST.stamp()
    A.i('s_load_dwordx16 s[4:19], s[0:1], 0')
    A.i('s_load_dwordx2 s[20:21], s[0:1], 80')
    A.i('s_mov_b32 s44, 0x05040100')
    A.i('s_mov_b32 s45, 0x07060302')
    A.i('v_lshrrev_b32 v1, 6, v0')
    A.i('v_readfirstlane_b32 s46, v1')
    A.i('v_and_b32 v2, 63, v0')
    A.i('v_lshrrev_b32 v3, 4, v2')
    A.i('v_and_b32 v4, 15, v0')
    A.i('s_cmp_lt_u32 s2, %d' % CH)
    A.branch('s_cbranch_scc1 K1_PART')
    A.i('s_cmp_lt_u32 s2, %d' % (CH + NTW))
    A.branch('s_cbranch_scc1 K1_TABLE')
    A.i('s_cmp_eq_u32 s2, %d' % (CH + NTW))
    A.branch('s_cbranch_scc0 K1_END')
    A.i('s_cmp_eq_u32 s46, 0')
    A.branch('s_cbranch_scc0 K1_END')
    A.i('s_waitcnt lgkmcnt(0)')
    srd(A, 24, 18, 19, 16 * 384)
    srd(A, 28, 20, 21, 6144, WB_OFF)
    A.i('v_mul_u32_u24 v5, %d, v3' % (4 * 384))
    A.i('v_lshl_add_u32 v5, v4, 3, v5')
    for p in range(3):
        for i in range(4):
            A.i('buffer_load_dwordx2 %s, v5, s[24:27], 0 offen offset:%d' % (vr(8 + (p * 4 + i) * 2, 2), i * 384 + p * 128))
    A.i('v_lshlrev_b32 v6, 4, v2')
    A.i('s_waitcnt vmcnt(0)')
    for p in range(3):
        for b in range(4):
            for t in range(2):
                r0 = 8 + (p * 4 + 2 * t) * 2 + (b >> 1)
                r1 = 8 + (p * 4 + 2 * t + 1) * 2 + (b >> 1)
                A.i('v_perm_b32 %s, %s, %s, %s' % (vr(32 + (p * 4 + b) * 2 + t), vr(r1), vr(r0), 's45' if b & 1 else 's44'))
    A.i('v_add_u32 v7, 4096, v6')
    for u in range(6):
        A.i('buffer_store_dwordx4 %s, %s, s[28:31], 0 offen offset:%d' % (vr(32 + 4 * u, 4), 'v6' if u < 4 else 'v7', (u & 3) * 1024))
    A.branch('s_branch K1_END')

    A.label('K1_PART')
    STAGE, CNT, PRE = 0, 25088, 26112
    SRC, DST, RANK = 8, 24, 40
    A.i('s_mul_i32 s40, s2, %d' % (CHE * 4))
    A.i('v_lshlrev_b32 v5, 4, v0')
    A.i('v_add_u32 v6, 8192, v5')
    A.i('v_add_u32 v7, 16384, v5')
    A.i('v_lshlrev_b32 v56, 2, v0')
    A.i('v_add_u32 v57, 24576, v56')
    A.i('s_waitcnt lgkmcnt(0)')
    srd(A, 24, 8, 9, E * 4)
    srd(A, 28, 10, 11, E * 4)
    for i in range(3):
        A.i('buffer_load_dwordx4 %s, %s, s[28:31], s40 offen' % (vr(DST + 4 * i, 4), vr(5 + i)))
        A.i('buffer_load_dwordx4 %s, %s, s[24:27], s40 offen' % (vr(SRC + 4 * i, 4), vr(5 + i)))
    A.i('buffer_load_dword %s, v57, s[28:31], s40 offen' % vr(DST + 12))
    A.i('buffer_load_dword %s, v57, s[24:27], s40 offen' % vr(SRC + 12))
    srd(A, 32, 20, 21, CH * REC_STRIDE, REC_OFF)
    srd(A, 36, 20, 21, CH * 1024, OFFS_OFF)
    A.i('v_mov_b32 v58, 0')
    A.i('v_mov_b32 v59, 1')
    A.i('v_and_b32 v60, 0x3fc, v56')
    A.i('ds_write_b32 v60, v58 offset:%d' % CNT)
    A.i('s_movk_i32 s41, -%d' % TILE)
    A.i('s_movk_i32 s47, %d' % (CHE - 12 * 512))
    A.i('v_cmp_gt_u32 s[42:43], s47, v0')
    A.i('s_waitcnt lgkmcnt(0)')
    A.i('s_barrier')
    for i in range(13):
        if i % 4 == 0:
            A.i('s_waitcnt vmcnt(%d)' % (6 - 2 * (i // 4) if i < 12 else 0))
            if i == 0:
                ST.stamp()
        d, s = DST + i, SRC + i
        A.i('v_mul_u32_u24 v61, 42800, %s' % vr(d))
        A.i('v_lshrrev_b32 v61, 22, v61')
        A.i('v_mad_i32_i24 %s, v61, s41, %s' % (vr(d), vr(d)))
        A.i('v_lshl_or_b32 %s, %s, 16, %s' % (vr(s), vr(d), vr(s)))
        A.i('v_lshlrev_b32 %s, 2, v61' % vr(d))
        if i == 12:
            A.i('s_mov_b64 exec, s[42:43]')
        A.i('ds_add_rtn_u32 %s, %s, v59 offset:%d' % (vr(RANK + i), vr(d), CNT))
    A.i('s_mov_b64 exec, -1')
    A.i('v_lshlrev_b32 v62, 4, v2')
    A.i('s_lshl_b32 s48, s46, 10')
    A.i('s_waitcnt lgkmcnt(0)')
    A.i('s_barrier')
    ST.stamp()
    A.i('ds_read_b128 v[64:67], v62 offset:%d' % CNT)
    A.i('s_waitcnt lgkmcnt(0)')
    A.i('v_add_u32 v69, v64, v65')
    A.i('v_add_u32 v70, v69, v66')
    A.i('v_add_u32 v71, v70, v67')
    A.i('v_mov_b32 v72, v71')
    wave_scan_add(A, 72)
    A.i('v_sub_u32 v76, v72, v71')
    A.i('v_add_u32 v77, v76, v64')
    A.i('v_add_u32 v78, v76, v69')
    A.i('v_add_u32 v79, v76, v70')
    A.i('v_add_u32 v63, s48, v62')
    A.i('ds_write_b128 v63, v[76:79] offset:%d' % PRE)
    A.i('s_cmp_eq_u32 s46, 0')
    A.branch('s_cbranch_scc0 K1_P_NOOFFS')
    for t in range(4):
        A.i('v_lshl_or_b32 %s, %s, 16, %s' % (vr(80 + t), vr(64 + t), vr(76 + t)))
    A.i('s_lshl_b32 s49, s2, 10')
    A.i('buffer_store_dwordx4 v[80:83], v62, s[36:39], s49 offen' + OPT['rec_store'])
    A.label('K1_P_NOOFFS')
    for i in range(13):
        A.i('v_add_u32 %s, s48, %s' % (vr(DST + i), vr(DST + i)))
    A.i('s_waitcnt lgkmcnt(0)')
    for i in range(13):
        A.i('ds_read_b32 %s, %s offset:%d' % (vr(DST + i), vr(DST + i), PRE))
    for i in range(13):
        if i == 0:
            A.i('s_waitcnt lgkmcnt(0)')
        A.i('v_add_lshl_u32 %s, %s, %s, 2' % (vr(DST + i), vr(DST + i), vr(RANK + i)))
        if i == 12:
            A.i('s_mov_b64 exec, s[42:43]')
        A.i('ds_write_b32 %s, %s offset:%d' % (vr(DST + i), vr(SRC + i), STAGE))
    A.i('s_mov_b64 exec, -1')
    A.i('s_mul_i32 s49, s2, %d' % REC_STRIDE)
    A.i('v_add_u32 v57, 24576, v5')
    A.i('v_cmp_gt_u32 s[42:43], 32, v0')
    A.i('s_waitcnt lgkmcnt(0)')
    A.i('s_barrier')
    ST.stamp()
    for i in range(3):
        A.i('ds_read_b128 %s, v5 offset:%d' % (vr(8 + 4 * i, 4), STAGE + 8192 * i))
    A.i('ds_read_b128 v[20:23], v5 offset:%d' % (STAGE + 24576))
    for i in range(3):
        A.i('s_waitcnt lgkmcnt(%d)' % (3 - i))
        A.i('buffer_store_dwordx4 %s, %s, s[32:35], s49 offen' % (vr(8 + 4 * i, 4), vr(5 + i)) + OPT['rec_store'])
    A.i('s_cmp_eq_u32 s46, 0')
    A.branch('s_cbranch_scc0 K1_PEND')
    A.i('s_waitcnt lgkmcnt(0)')
    A.i('s_mov_b64 exec, s[42:43]')
    A.i('buffer_store_dwordx4 v[20:23], v57, s[32:35], s49 offen' + OPT['rec_store'])
    A.i('s_mov_b64 exec, -1')
    A.label('K1_PEND')
    if OPT['stamps']:
        A.i('s_waitcnt vmcnt(0)')
        ST.stamp()
        A.i('s_lshl_b32 s50, s2, 3')
        A.i('s_add_u32 s50, s50, s46')
        ST.store(52, 20, 100, 50)
    A.branch('s_branch K1_END')

    A.label('K1_TABLE')
    ST.n = 1
    WL, WP, S, V, H, D1, D2 = 8, 24, 40, 48, 72, 96, 80
    A.i('s_sub_u32 s40, s2, %d' % CH)
    A.i('s_lshl_b32 s40, s40, 7')
    A.i('s_lshl_b32 s41, s46, 4')
    A.i('s_add_u32 s40, s40, s41')
    A.i('s_and_b32 s41, s46, 1')
    A.i('s_sub_u32 s42, s46, 2')
    A.i('s_lshr_b32 s42, s42, 1')
    A.i('s_lshl_b32 s42, s42, 7')
    A.i('s_movk_i32 s43, 384')
    A.i('s_cmp_lt_u32 s46, 2')
    A.i('s_cselect_b32 s43, 128, s43')
    A.i('s_cselect_b32 s42, 0, s42')
    A.i('s_waitcnt lgkmcnt(0)')
    A.i('s_cselect_b32 s24, s14, s16')
    A.i('s_cselect_b32 s25, s15, s17')
    A.i('s_lshl_b32 s26, s43, 6')
    A.i('s_and_b32 s25, s25, 0xffff')
    A.i('s_mov_b32 s27, 0x20000')
    srd(A, 28, 4, 5, N * 512)
    srd(A, 32, 20, 21, TAB_BYTES)
    A.i('s_lshl_b32 s41, s41, 3')
    A.i('v_lshl_add_u32 v5, v3, 4, s41')
    A.i('v_mul_lo_u32 v5, v5, s43')
    A.i('v_lshl_add_u32 v5, v4, 3, v5')
    A.i('s_lshl_b32 s47, s40, 9')
    A.i('v_lshlrev_b32 v6, 9, v4')
    A.i('v_lshl_add_u32 v6, v3, 5, v6')
    for i in range(8):
        A.i('buffer_load_dwordx2 %s, v5, s[24:27], s42 offen' % vr(WL + 2 * i, 2))
        if i < 7:
            A.i('s_add_u32 s42, s42, s43')
    A.i('buffer_load_dwordx4 %s, v6, s[28:31], s47 offen' % vr(S, 4))
    A.i('buffer_load_dwordx4 %s, v6, s[28:31], s47 offen offset:16' % vr(S + 4, 4))
    A.i('v_lshlrev_b32 v7, 11, v3')
    A.i('v_lshl_add_u32 v7, v4, 3, v7')
    for r in range(4):
        for k in range(3):
            A.i('buffer_load_dwordx2 %s, v7, s[28:31], s47 offen offset:%d' % (vr(V + (r * 3 + k) * 2, 2), r * 512 + 128 * (k + 1)))
    A.i('s_lshl_b32 s48, s46, 12')
    A.i('v_lshlrev_b32 v1, 4, v2')
    A.i('v_add_u32 v5, s48, v1')
    A.i('s_waitcnt vmcnt(14)')
    for b in range(4):
        for t in range(4):
            r0 = WL + (2 * t) * 2 + (b >> 1)
            r1 = WL + (2 * t + 1) * 2 + (b >> 1)
            A.i('v_perm_b32 %s, %s, %s, %s' % (vr(WP + 4 * b + t), vr(r1), vr(r0), 's45' if b & 1 else 's44'))
        A.i('ds_write_b128 v5, %s offset:%d' % (vr(WP + 4 * b, 4), b * 1024))
    A.i('s_waitcnt lgkmcnt(0)')
    A.i('s_barrier')
    ST.stamp()
    for ks in range(2):
        for b in range(4):
            A.i('ds_read_b128 %s, v1 offset:%d' % (vr(8 + (ks * 4 + b) * 4, 4), ks * 4096 + b * 1024))
    A.i('s_waitcnt vmcnt(12) lgkmcnt(4)')
    for b in range(4):
        A.i('v_mfma_f32_16x16x32_bf16 %s, %s, %s, 0' % (vr(D1 + 4 * b, 4), vr(8 + b * 4, 4), vr(S, 4)))
    A.i('s_waitcnt lgkmcnt(0)')
    for b in range(4):
        A.i('v_mfma_f32_16x16x32_bf16 %s, %s, %s, %s' % (vr(D1 + 4 * b, 4), vr(8 + (4 + b) * 4, 4), vr(S + 4, 4), vr(D1 + 4 * b, 4)))

    def w2_read(p):
        for ks in range(2):
            for b in range(4):
                A.i('ds_read_b128 %s, v1 offset:%d' % (vr(8 + (ks * 4 + b) * 4, 4), (2 + p * 2 + ks) * 4096 + b * 1024))
    w2_read(1)
    A.i('s_mov_b32 s49, 0x%x' % f32bits(-1.4426950408889634))
    T = 112
    for b in range(4):
        for r in range(4):
            rnd(A, D1 + 4 * b + r, D1 + 4 * b + r)
    for x in range(16):
        A.i('v_mul_f32 %s, s49, %s' % (vr(T + x), vr(D1 + x)))
    for x in range(16):
        A.i('v_exp_f32 %s, %s' % (vr(T + x), vr(T + x)))
    for x in range(16):
        A.i('v_add_f32 %s, 1.0, %s' % (vr(T + x), vr(T + x)))
    for x in range(16):
        A.i('v_rcp_f32 %s, %s' % (vr(T + x), vr(T + x)))
    for x in range(16):
        A.i('v_mul_f32 %s, %s, %s' % (vr(T + x), vr(T + x), vr(D1 + x)))
    for ks in range(2):
        for t in range(4):
            r = 2 * ks + (t >> 1)
            b = (t & 1) * 2
            A.i('v_cvt_pk_bf16_f32 %s, %s, %s' % (vr(H + ks * 4 + t), vr(T + 4 * b + r), vr(T + 4 * (b + 1) + r)))
    order = [1, 2, 0]
    for oi, p in enumerate(order):
        A.i('s_waitcnt lgkmcnt(4)')
        for b in range(4):
            A.i('v_mfma_f32_16x16x32_bf16 %s, %s, %s, 0' % (vr(D2 + (p * 4 + b) * 4, 4), vr(H, 4), vr(8 + b * 4, 4)))
        A.i('s_waitcnt lgkmcnt(0)')
        for b in range(4):
            A.i('v_mfma_f32_16x16x32_bf16 %s, %s, %s, %s' % (vr(D2 + (p * 4 + b) * 4, 4), vr(H + 4, 4), vr(8 + (4 + b) * 4, 4), vr(D2 + (p * 4 + b) * 4, 4)))
        if oi < 2:
            w2_read(order[oi + 1])
    ST.stamp()
    A.i('s_mul_i32 s47, s40, %d' % ROWB)
    A.i('v_mul_u32_u24 v5, %d, v3' % (4 * ROWB))
    A.i('v_lshl_add_u32 v6, v4, 4, v5')
    A.i('v_lshl_add_u32 v7, v4, 3, v5')
    A.i('s_mov_b32 s49, 0xffff0000')
    for b in range(4):
        for r in range(4):
            rnd(A, D2 + (4 + b) * 4 + r, D2 + (4 + b) * 4 + r)
    A.i('s_waitcnt vmcnt(0)')
    TM = 40
    for r in range(4):
        O = 8 + (r & 1) * 12
        for k in range(3):
            for hb in range(2):
                src = V + (r * 3 + k) * 2 + hb
                A.i('v_lshlrev_b32 %s, 16, %s' % (vr(TM + 2 * hb), vr(src)))
                A.i('v_and_b32 %s, s49, %s' % (vr(TM + 2 * hb + 1), vr(src)))
            for b in range(4):
                A.i('v_mul_f32 %s, %s, %s' % (vr(TM + b), vr(TM + b), vr(D2 + (4 + b) * 4 + r)))
            for hb in range(2):
                A.i('v_cvt_pk_bf16_f32 %s, %s, %s' % (vr(O + 4 * hb + k), vr(TM + 2 * hb), vr(TM + 2 * hb + 1)))
        for hb in range(2):
            A.i('v_cvt_pk_bf16_f32 %s, %s, %s' % (vr(O + 4 * hb + 3), vr(D2 + (8 + 2 * hb) * 4 + r), vr(D2 + (8 + 2 * hb + 1) * 4 + r)))
            A.i('v_cvt_pk_bf16_f32 %s, %s, %s' % (vr(O + 8 + hb), vr(D2 + (2 * hb) * 4 + r), vr(D2 + (2 * hb + 1) * 4 + r)))
        A.i('buffer_store_dwordx4 %s, v6, s[32:35], s47 offen offset:%d' % (vr(O, 4), r * ROWB) + OPT['tab_store'])
        A.i('buffer_store_dwordx4 %s, v6, s[32:35], s47 offen offset:%d' % (vr(O + 4, 4), r * ROWB + 256) + OPT['tab_store'])
        A.i('buffer_store_dwordx2 %s, v7, s[32:35], s47 offen offset:%d' % (vr(O + 8, 2), r * ROWB + 512) + OPT['tab_store'])
    if OPT['stamps']:
        ST.stamp()
        A.i('s_waitcnt vmcnt(0)')
        ST.stamp()
        A.i('s_lshl_b32 s50, s2, 3')
        A.i('s_add_u32 s50, s50, s46')
        ST.store(52, 20, 100, 50)
    A.label('K1_END')
    A.i('s_endpgm')
    return A


K2_LDS = 163840
POS_DMA = 147
CNT2 = POS_DMA * 1024
PRE2 = CNT2 + 2048
MISC2 = PRE2 + 2048
NG = 8
D2THR = 24.2


def gen_k2():
    A = Asm()
    ST = Stamper(A, 0, 1)
    LOFFA, LOFFC, SH, FR, LPTR, DPTR, DD, OH, SRCP, ARBF = 1, 2, 3, 4, 8, 9, 10, 12, 16, 20
    M, RT, ARBFN, P, W, AOH, TA, TB, TC = 24, 28, 32, 36, 48, 72, 88, 120, 152
    WBA = 64
    S_WAVE, S_TILE6, S_NG, S_ROUND, S_MORE, S_BASE, S_NOWN, S_NIT, S_NMAX, S_IT = 46, 47, 48, 49, 50, 51, 52, 53, 54, 55
    S_HI, S_640, S_T0, S_T1, S_PI, S_02, S_THR, S_BLK = 56, 57, 58, 59, 60, 61, 62, 63
    MASKS = 64
    SRD_TAB, SRD_REC, SRD_POS, SRD_X = 24, 28, 32, 36
    if OPT['stamps']:
        ST.b = 4
    A.i('s_cmp_ge_u32 s2, %d' % NTILE)
    A.branch('s_cbranch_scc1 K2_END')
    if OPT['stamps']:
        A.i('s_memrealtime s[96:97]')
    A.i('s_load_dwordx4 s[4:7], s[0:1], 0')
    A.i('s_load_dwordx2 s[8:9], s[0:1], 32')
    A.i('s_load_dwordx2 s[10:11], s[0:1], 64')
    A.i('s_load_dwordx2 s[12:13], s[0:1], 80')
    TID, LANE, Q, NN = 0, 100, 101, 102
    A.i('v_lshrrev_b32 v1, 6, v0')
    A.i('v_readfirstlane_b32 %s, v1' % sr(S_WAVE))
    A.i('v_and_b32 %s, 63, v0' % vr(LANE))
    A.i('v_lshrrev_b32 %s, 4, %s' % (vr(Q), vr(LANE)))
    A.i('v_and_b32 %s, 15, v0' % vr(NN))
    A.i('s_mul_i32 %s, s2, %d' % (sr(S_TILE6), TILE * 6))
    A.i('s_mov_b32 %s, 0xffff0000' % sr(S_HI))
    A.i('s_movk_i32 %s, %d' % (sr(S_640), ROWB))
    A.i('s_mov_b32 %s, 0x%x' % (sr(S_PI), f32bits(3.141592653589793)))
    A.i('s_mov_b32 %s, 0x%x' % (sr(S_02), f32bits(0.2)))
    A.i('s_mov_b32 %s, 0x%x' % (sr(S_THR), f32bits(D2THR)))
    A.i('s_mov_b32 %s, 0' % sr(S_ROUND))
    A.i('v_lshlrev_b32 %s, 4, %s' % (vr(LOFFA), vr(NN)))
    A.i('v_lshlrev_b32 %s, 3, %s' % (vr(LOFFC), vr(NN)))
    A.i('v_add_u32 %s, 512, %s' % (vr(LOFFC), vr(LOFFC)))
    A.i('v_sub_u32 %s, 15, %s' % (vr(SH), vr(NN)))
    A.i('v_lshl_or_b32 %s, %s, 16, %s' % (vr(SH), vr(SH), vr(SH)))
    OFFW, SEGA, CNTV = 103, 104, 105
    A.i('v_lshrrev_b32 %s, 2, v0' % vr(SEGA))
    A.i('v_lshlrev_b32 v106, 10, %s' % vr(SEGA))
    A.i('s_lshl_b32 %s, s2, 2' % sr(S_T0))
    A.i('s_waitcnt lgkmcnt(0)')
    srd(A, SRD_X, 12, 13, CH * 1024, OFFS_OFF)
    A.i('buffer_load_dword %s, v106, %s, %s offen' % (vr(OFFW), sr(SRD_X, 4), sr(S_T0)))
    srd(A, SRD_POS, 6, 7, N * 6)
    srd(A, SRD_TAB, 12, 13, TAB_BYTES)
    srd(A, SRD_REC, 12, 13, CH * REC_STRIDE, REC_OFF)
    srd(A, 40, 12, 13, 6144, WB_OFF)
    srd(A, 16, 8, 9, 32)
    for x in range(64):
        A.i('v_accvgpr_write_b32 %s, 0' % ar(x))
    A.i('v_lshlrev_b32 v107, 4, %s' % vr(LANE))
    A.i('v_add_u32 v108, 4096, v107')
    for u in range(6):
        A.i('buffer_load_dwordx4 %s, %s, s[40:43], 0 offen offset:%d' % (ar(WBA + 4 * u, 4), 'v107' if u < 4 else 'v108', (u & 3) * 1024))
    A.i('v_lshlrev_b32 v108, 3, %s' % vr(Q))
    A.i('buffer_load_dwordx2 v[110:111], v108, s[16:19], 0 offen')
    A.i('v_mul_u32_u24 %s, %d, %s' % (vr(SEGA), REC_STRIDE, vr(SEGA)))
    A.i('v_and_b32 v109, 3, v0')
    A.i('v_lshlrev_b32 v109, 1, v109')
    A.i('s_waitcnt vmcnt(7)')
    A.i('v_and_b32 v106, 0xffff, %s' % vr(OFFW))
    A.i('v_add_u32 v106, v106, v109')
    A.i('v_lshl_add_u32 %s, v106, 2, %s' % (vr(SEGA), vr(SEGA)))
    A.i('v_lshrrev_b32 %s, 16, %s' % (vr(CNTV), vr(OFFW)))
    A.i('v_sub_u32 %s, %s, v109' % (vr(CNTV), vr(CNTV)))
    A.i('s_waitcnt vmcnt(0)')
    A.i('v_lshlrev_b32 %s, 16, v110' % vr(FR))
    A.i('v_and_b32 %s, %s, v110' % (vr(FR + 1), sr(S_HI)))
    A.i('v_lshlrev_b32 %s, 16, v111' % vr(FR + 2))
    A.i('v_and_b32 %s, %s, v111' % (vr(FR + 3), sr(S_HI)))
    A.label('K2_ROUND')
    REC, QX, RANK = 112, 128, 8
    A.i('v_max_i32 v106, 0, %s' % vr(CNTV))
    wave_scan_max(A, 106)
    A.i('v_readlane_b32 %s, v106, 63' % sr(S_T0))
    A.i('s_add_u32 %s, %s, 7' % (sr(S_NG), sr(S_T0)))
    A.i('s_lshr_b32 %s, %s, 3' % (sr(S_NG), sr(S_NG)))
    A.i('s_cmp_gt_u32 %s, %d' % (sr(S_NG), NG))
    A.i('s_cselect_b32 %s, 1, 0' % sr(S_MORE))
    A.i('s_min_u32 %s, %s, %d' % (sr(S_NG), sr(S_NG), NG))
    for g in range(NG):
        A.i('s_cmp_gt_u32 %s, %d' % (sr(S_NG), g))
        A.branch('s_cbranch_scc0 K2_RL_DONE')
        A.i('v_cmp_lt_i32 vcc, %d, %s' % (8 * g, vr(CNTV)))
        A.i('s_mov_b64 exec, vcc')
        A.i('buffer_load_dwordx2 %s, %s, %s, 0 offen offset:%d' % (vr(REC + 2 * g, 2), vr(SEGA), sr(SRD_REC, 4), 32 * g))
        A.i('s_mov_b64 exec, -1')
    A.label('K2_RL_DONE')
    A.i('v_lshlrev_b32 v107, 4, %s' % vr(LANE))
    A.i('s_lshl_b32 %s, %s, 10' % (sr(S_T0), sr(S_WAVE)))
    A.label('K2_DMA')
    A.i('s_mov_b32 m0, %s' % sr(S_T0))
    A.i('buffer_load_dwordx4 v107, %s, %s offen lds' % (sr(SRD_POS, 4), sr(S_T0)))
    A.i('s_add_u32 %s, %s, 8192' % (sr(S_T0), sr(S_T0)))
    A.i('s_cmp_lt_u32 %s, %d' % (sr(S_T0), POS_DMA * 1024))
    A.branch('s_cbranch_scc1 K2_DMA')
    A.i('v_lshlrev_b32 v106, 2, v0')
    A.i('v_mov_b32 v108, 0')
    A.i('v_add_u32 v106, %d, v106' % CNT2)
    A.i('ds_write_b32 v106, v108')
    A.i('s_lshl_b32 %s, %s, 2' % (sr(S_T0), sr(S_WAVE)))
    A.i('s_add_u32 %s, %s, %d' % (sr(S_T0), sr(S_T0), MISC2))
    A.i('v_mov_b32 v108, %s' % sr(S_T0))
    A.i('v_mov_b32 v109, %s' % sr(S_MORE))
    A.i('ds_write_b32 v108, v109')
    A.i('v_mov_b32 v110, 1')
    A.i('v_mov_b32 v111, %d' % CNT2)
    A.i('s_waitcnt vmcnt(0) lgkmcnt(0)')
    A.i('s_barrier')
    if OPT['stamps']:
        A.i('s_memrealtime s[98:99]')
    for g in range(NG):
        A.i('s_mov_b64 %s, 0' % sr(MASKS + 4 * g, 2))
        A.i('s_mov_b64 %s, 0' % sr(MASKS + 4 * g + 2, 2))
    X = 24
    for g in range(NG):
        A.i('s_cmp_gt_u32 %s, %d' % (sr(S_NG), g))
        A.branch('s_cbranch_scc0 K2_FL_DONE')
        for t in range(2):
            rec = REC + 2 * g + t
            x = X + 20 * t
            A.i('v_mad_u32_u16 %s, %s, 6, 0' % (vr(x), vr(rec)))
            A.i('v_mad_u32_u16 %s, %s, 6, %s op_sel:[1,0,0,0]' % (vr(x + 1), vr(rec), sr(S_TILE6)))
            A.i('v_and_b32 %s, -4, %s' % (vr(x + 2), vr(x)))
            A.i('v_and_b32 %s, -4, %s' % (vr(x + 3), vr(x + 1)))
            A.i('ds_read2_b32 %s, %s offset0:0 offset1:1' % (vr(x + 4, 2), vr(x + 2)))
            A.i('ds_read2_b32 %s, %s offset0:0 offset1:1' % (vr(x + 6, 2), vr(x + 3)))
            A.i('v_lshlrev_b32 %s, 3, %s' % (vr(x), vr(x)))
            A.i('v_lshlrev_b32 %s, 3, %s' % (vr(x + 1), vr(x + 1)))
            A.i('v_bfe_u32 %s, %s, 16, 3' % (vr(x + 14), vr(rec)))
            A.i('v_bfe_u32 %s, %s, 9, 6' % (vr(x + 15), vr(rec)))
            A.i('v_lshlrev_b32 %s, 2, %s' % (vr(x + 15), vr(x + 15)))
            A.i('v_lshl_or_b32 %s, %s, 8, %s' % (vr(x + 14), vr(x + 14), vr(x + 15)))
        for t in range(2):
            s = 2 * g + t
            x = X + 20 * t
            A.i('s_waitcnt lgkmcnt(%d)' % (2 if t == 0 else 0))
            for e in range(2):
                w0, w1, sh, o = x + 4 + 2 * e, x + 5 + 2 * e, x + e, x + 8 + 3 * e
                A.i('v_alignbit_b32 %s, %s, %s, %s' % (vr(w0), vr(w1), vr(w0), vr(sh)))
                A.i('v_lshrrev_b32 %s, %s, %s' % (vr(w1), vr(sh), vr(w1)))
                A.i('v_lshlrev_b32 %s, 16, %s' % (vr(o), vr(w0)))
                A.i('v_and_b32 %s, %s, %s' % (vr(o + 1), sr(S_HI), vr(w0)))
                A.i('v_lshlrev_b32 %s, 16, %s' % (vr(o + 2), vr(w1)))
            for c in range(3):
                A.i('v_sub_f32 %s, %s, %s' % (vr(x + 8 + c), vr(x + 8 + c), vr(x + 11 + c)))
            A.i('v_mul_f32 %s, %s, %s' % (vr(x + 11), vr(x + 8), vr(x + 8)))
            A.i('v_fmac_f32 %s, %s, %s' % (vr(x + 11), vr(x + 9), vr(x + 9)))
            A.i('v_fmac_f32 %s, %s, %s' % (vr(x + 11), vr(x + 10), vr(x + 10)))
            A.i('v_cvt_pk_bf16_f32 %s, %s, %s' % (vr(QX + 2 * s), vr(x + 8), vr(x + 9)))
            A.i('v_cvt_pk_bf16_f32 %s, 0, %s' % (vr(QX + 2 * s + 1), vr(x + 10)))
            A.i('v_cmp_lt_i32 vcc, %d, %s' % (8 * g + t, vr(CNTV)))
            A.i('v_cmp_gt_f32 %s, %s, %s' % (sr(MASKS + 2 * s, 2), sr(S_THR), vr(x + 11)))
            A.i('v_or_b32 %s, %s, %s' % (vr(QX + 2 * s + 1), vr(QX + 2 * s + 1), vr(x + 14)))
            A.i('v_add_u32 %s, v111, %s' % (vr(x + 14), vr(x + 14)))
            A.i('s_and_b64 %s, %s, vcc' % (sr(MASKS + 2 * s, 2), sr(MASKS + 2 * s, 2)))
        for t in range(2):
            s = 2 * g + t
            x = X + 20 * t
            A.i('s_mov_b64 exec, %s' % sr(MASKS + 2 * s, 2))
            A.i('ds_add_rtn_u32 %s, %s, v110' % (vr(RANK + s), vr(x + 14)))
        A.i('s_mov_b64 exec, -1')
    A.label('K2_FL_DONE')
    A.i('v_lshlrev_b32 v106, 5, %s' % vr(LANE))
    A.i('v_add_u32 v106, %d, v106' % CNT2)
    A.i('v_lshlrev_b32 v107, 2, v0')
    A.i('v_add_u32 v107, %d, v107' % CNT2)
    A.i('v_mov_b32 v108, %d' % MISC2)
    A.i('s_waitcnt lgkmcnt(0)')
    A.i('s_barrier')
    A.i('ds_read_b128 v[24:27], v106')
    A.i('ds_read_b128 v[28:31], v106 offset:16')
    A.i('ds_read_b32 v32, v107')
    A.i('ds_read_b128 v[36:39], v108')
    A.i('ds_read_b128 v[40:43], v108 offset:16')
    A.i('s_waitcnt lgkmcnt(3)')
    A.i('v_add3_u32 v24, v24, v25, v26')
    A.i('v_add3_u32 v27, v27, v28, v29')
    A.i('v_add3_u32 v24, v24, v30, v31')
    A.i('v_add_u32 v24, v24, v27')
    for sh in (1, 2, 4):
        A.i('v_add_u32_dpp v24, v24, v24 row_shr:%d row_mask:0xf bank_mask:0xf' % sh)
    A.i('s_waitcnt lgkmcnt(2)')
    A.i('v_mov_b32 v33, v32')
    wave_scan_add(A, 33)
    A.i('v_sub_u32 v33, v33, v32')
    A.i('s_mov_b32 %s, 0' % sr(S_BASE))
    A.i('s_mov_b32 %s, 0' % sr(S_NMAX))
    A.i('s_mov_b32 %s, 0' % sr(S_NOWN))
    for w in range(8):
        A.i('v_readlane_b32 %s, v24, %d' % (sr(S_T0), 8 * w + 7))
        A.i('s_max_u32 %s, %s, %s' % (sr(S_NMAX), sr(S_NMAX), sr(S_T0)))
        A.i('s_cmp_eq_u32 %s, %d' % (sr(S_WAVE), w))
        A.i('s_cselect_b32 %s, %s, %s' % (sr(S_NOWN), sr(S_T0), sr(S_NOWN)))
        A.i('s_add_u32 %s, %s, 63' % (sr(S_T0), sr(S_T0)))
        A.i('s_and_b32 %s, %s, -64' % (sr(S_T0), sr(S_T0)))
        A.i('s_cmp_gt_u32 %s, %d' % (sr(S_WAVE), w))
        A.i('s_cselect_b32 %s, %s, 0' % (sr(S_T0), sr(S_T0)))
        A.i('s_add_u32 %s, %s, %s' % (sr(S_BASE), sr(S_BASE), sr(S_T0)))
    A.i('v_add_u32 v33, %s, v33' % sr(S_BASE))
    A.i('ds_write_b32 v107, v33 offset:2048')
    A.i('s_waitcnt lgkmcnt(0)')
    A.i('v_or3_b32 v36, v36, v37, v38')
    A.i('v_or3_b32 v39, v39, v40, v41')
    A.i('v_or3_b32 v36, v36, v42, v43')
    A.i('v_or_b32 v36, v36, v39')
    A.i('v_readfirstlane_b32 %s, v36' % sr(S_MORE))
    A.i('s_add_u32 %s, %s, 31' % (sr(S_NMAX), sr(S_NMAX)))
    A.i('s_lshr_b32 %s, %s, 5' % (sr(S_NMAX), sr(S_NMAX)))
    A.i('s_add_u32 %s, %s, 31' % (sr(S_NIT), sr(S_NOWN)))
    A.i('s_lshr_b32 %s, %s, 5' % (sr(S_NIT), sr(S_NIT)))
    A.i('s_lshl_b32 %s, %s, 4' % (sr(S_BASE), sr(S_BASE)))
    A.i('v_mov_b32 v111, %d' % PRE2)
    A.i('s_barrier')
    for g in range(NG):
        A.i('s_cmp_gt_u32 %s, %d' % (sr(S_NG), g))
        A.branch('s_cbranch_scc0 K2_SC_DONE')
        for t in range(2):
            s = 2 * g + t
            A.i('v_and_b32 %s, 0x7fc, %s' % (vr(X + t), vr(QX + 2 * s + 1)))
            A.i('v_add_u32 %s, v111, %s' % (vr(X + t), vr(X + t)))
            A.i('ds_read_b32 %s, %s' % (vr(X + t), vr(X + t)))
        A.i('s_waitcnt lgkmcnt(0)')
        for t in range(2):
            s = 2 * g + t
            A.i('v_add_lshl_u32 %s, %s, %s, 4' % (vr(X + 2 + t), vr(X + t), vr(RANK + s)))
            A.i('s_mov_b64 exec, %s' % sr(MASKS + 2 * s, 2))
            A.i('ds_write_b64 %s, %s' % (vr(X + 2 + t), vr(QX + 2 * s, 2)))
            A.i('ds_write_b32 %s, %s offset:8' % (vr(X + 2 + t), vr(REC + s)))
            A.i('s_mov_b64 exec, -1')
    A.label('K2_SC_DONE')
    A.i('v_add_u32 %s, %d, %s' % (vr(SEGA), NG * 32, vr(SEGA)))
    A.i('v_subrev_u32 %s, %d, %s' % (vr(CNTV), NG * 8, vr(CNTV)))
    A.i('v_lshlrev_b32 v106, 3, v0')
    A.i('v_add_u32 v106, %d, v106' % (MISC2 + 64))
    A.i('ds_write_b64 v106, %s' % vr(SEGA, 2))
    A.i('s_waitcnt lgkmcnt(0)')
    A.i('s_barrier')
    if OPT['stamps']:
        A.i('s_memrealtime s[100:101]')
    A.i('s_mov_b32 %s, 0' % sr(S_IT))
    A.i('s_cmp_eq_u32 %s, 0' % sr(S_NIT))
    A.branch('s_cbranch_scc1 K2_LOOP')

    FA, FB, FI = 36, 37, 38
    Y = 40
    A.i('v_lshl_add_u32 %s, %s, 4, %s' % (vr(FA), vr(LANE), sr(S_BASE)))
    A.i('v_lshrrev_b32 %s, 5, %s' % (vr(FB), vr(LANE)))
    A.i('v_lshlrev_b32 %s, 9, %s' % (vr(FB), vr(FB)))
    A.i('v_and_b32 %s, 31, %s' % (vr(FI), vr(LANE)))
    A.i('v_lshl_add_u32 v39, %s, 2, %s' % (vr(FI), vr(FB)))
    A.i('v_add_u32 v39, %s, v39' % sr(S_BASE))
    A.i('v_lshl_add_u32 %s, %s, 1, %s' % (vr(FB), vr(FI), vr(FB)))
    A.i('v_add_u32 %s, %s, %s' % (vr(FB), sr(S_BASE), vr(FB)))
    A.i('v_mov_b32 %s, %s' % (vr(FI), vr(LANE)))
    A.i('v_lshl_add_u32 %s, %s, 4, %s' % (vr(LPTR), vr(Q), sr(S_BASE)))
    A.i('v_lshrrev_b32 %s, 2, %s' % (vr(DPTR), vr(NN)))
    A.i('v_lshlrev_b32 %s, 3, %s' % (vr(DPTR), vr(DPTR)))
    A.i('v_and_b32 %s, 3, %s' % (vr(DD), vr(NN)))
    A.i('v_add_u32 %s, %s, %s' % (vr(DPTR), vr(DPTR), vr(DD)))
    A.i('v_lshl_add_u32 %s, %s, 2, %s' % (vr(DPTR), vr(DPTR), sr(S_BASE)))
    A.i('v_add_u32 %s, 384, %s' % (vr(DPTR), vr(DPTR)))
    A.i('s_mov_b32 %s, 0' % sr(S_BLK))
    A.label('K2_FIN')
    A.i('ds_read_b96 %s, %s' % (vr(Y, 3), vr(FA)))
    A.i('v_cmp_gt_u32 vcc, %s, %s' % (sr(S_NOWN), vr(FI)))
    A.i('s_waitcnt lgkmcnt(0)')
    x, sq, d, rc, f, t = Y + 4, Y + 8, Y + 12, Y + 13, Y + 14, Y + 15
    A.i('v_lshlrev_b32 %s, 16, %s' % (vr(x), vr(Y)))
    A.i('v_and_b32 %s, %s, %s' % (vr(x + 1), sr(S_HI), vr(Y)))
    A.i('v_and_b32 %s, %s, %s' % (vr(x + 2), sr(S_HI), vr(Y + 1)))
    for c in range(3):
        A.i('v_mul_f32 %s, %s, %s' % (vr(sq + c), vr(x + c), vr(x + c)))
    for c in range(3):
        rnd(A, sq + c, sq + c)
    A.i('v_add_f32 %s, %s, %s' % (vr(d), vr(sq), vr(sq + 1)))
    A.i('v_add_f32 %s, %s, %s' % (vr(d), vr(d), vr(sq + 2)))
    rnd(A, d, d)
    A.i('v_add_f32 %s, 0x%x, %s' % (vr(d), f32bits(1e-8), vr(d)))
    rnd(A, d, d)
    A.i('v_sqrt_f32 %s, %s' % (vr(d), vr(d)))
    rnd(A, d, d)
    A.i('v_cndmask_b32 %s, 1.0, %s, vcc' % (vr(d), vr(d)))
    A.i('v_rcp_f32 %s, %s' % (vr(rc), vr(d)))
    A.i('v_mul_f32 %s, %s, %s' % (vr(t), sr(S_PI), vr(d)))
    rnd(A, t, t)
    A.i('v_mul_f32 %s, %s, %s' % (vr(t), sr(S_02), vr(t)))
    rnd(A, t, t)
    A.i('v_mul_f32 %s, 0.15915494, %s' % (vr(t), vr(t)))
    A.i('v_cos_f32 %s, %s' % (vr(t), vr(t)))
    for c in range(3):
        A.i('v_mul_f32 %s, %s, %s' % (vr(x + c), vr(x + c), vr(rc)))
    rnd(A, t, t)
    for c in range(3):
        rnd(A, x + c, x + c)
    A.i('v_add_f32 %s, 1.0, %s' % (vr(t), vr(t)))
    rnd(A, t, t)
    A.i('v_mul_f32 %s, 0.5, %s' % (vr(f), vr(t)))
    A.i('v_bfe_u32 %s, %s, 19, 4' % (vr(t), vr(Y + 2)))
    A.i('v_lshlrev_b32 %s, %s, 1' % (vr(t), vr(t)))
    A.i('v_cndmask_b32 %s, 0, %s, vcc' % (vr(t), vr(t)))
    A.i('v_cndmask_b32 %s, -1, %s, vcc' % (vr(Y + 2), vr(Y + 2)))
    A.i('v_cmp_gt_f32 vcc, 0x%x, %s' % (f32bits(5.0), vr(d)))
    A.i('v_cndmask_b32 %s, 0, %s, vcc' % (vr(f), vr(f)))
    for c in range(3):
        A.i('v_mul_f32 %s, %s, %s' % (vr(x + c), vr(x + c), vr(f)))
    A.i('v_cvt_pk_bf16_f32 %s, %s, %s' % (vr(x), vr(x), vr(x + 1)))
    A.i('v_cvt_pk_bf16_f32 %s, %s, %s' % (vr(x + 2), vr(x + 2), vr(f)))
    A.i('ds_write_b16 %s, %s' % (vr(FB), vr(Y + 2)))
    A.i('ds_write_b16 %s, %s offset:64' % (vr(FB), vr(t)))
    A.i('ds_write_b16_d16_hi %s, %s offset:128' % (vr(FB), vr(x + 2)))
    A.i('ds_write_b16 %s, %s offset:192' % (vr(FB), vr(x)))
    A.i('ds_write_b16_d16_hi %s, %s offset:256' % (vr(FB), vr(x)))
    A.i('ds_write_b16 %s, %s offset:320' % (vr(FB), vr(x + 2)))
    A.i('ds_write_b32 v39, %s offset:384' % vr(d))
    A.i('v_add_u32 %s, 1024, %s' % (vr(FA), vr(FA)))
    A.i('v_add_u32 %s, 1024, %s' % (vr(FB), vr(FB)))
    A.i('v_add_u32 v39, 1024, v39')
    A.i('v_add_u32 %s, 64, %s' % (vr(FI), vr(FI)))
    A.i('s_cmp_lg_u32 %s, 0' % sr(S_BLK))
    A.branch('s_cbranch_scc1 K2_FIN_NEXT')

    def issue_loads(which):
        for j in range(8):
            a = M + (j & 3)
            A.i('v_mad_u32_u16 %s, %s, %s, %s%s' % (vr(a), vr(SRCP + (j >> 1)), sr(S_640), vr(LOFFC if which == 2 else LOFFA),
                                                    ' op_sel:[1,0,0,0]' if j & 1 else ''))
            if which == 0:
                A.i('buffer_load_dwordx4 %s, %s, %s, 0 offen' % (vr(TA + 4 * j, 4), vr(a), sr(SRD_TAB, 4)))
            elif which == 1:
                A.i('buffer_load_dwordx4 %s, %s, %s, 0 offen offset:256' % (vr(TB + 4 * j, 4), vr(a), sr(SRD_TAB, 4)))
            else:
                A.i('buffer_load_dwordx2 %s, %s, %s, 0 offen' % (vr(TC + 2 * j, 2), vr(a), sr(SRD_TAB, 4)))

    A.i('ds_read_b128 %s, %s' % (vr(SRCP, 4), vr(LPTR)))
    A.i('s_waitcnt lgkmcnt(0)')
    for w_ in range(3):
        issue_loads(w_)
    A.label('K2_FIN_NEXT')
    A.i('s_add_u32 %s, %s, 64' % (sr(S_BLK), sr(S_BLK)))
    A.i('s_cmp_lt_u32 %s, %s' % (sr(S_BLK), sr(S_NOWN)))
    A.branch('s_cbranch_scc1 K2_FIN')

    def rbf_ops(h):
        L = []
        dv = DD + h
        for i in range(4):
            L.append('v_mul_f32 %s, %s, %s' % (vr(RT + i), vr(dv), vr(FR + i)))
        for i in range(4):
            L.append('v_cvt_pk_bf16_f32 %s, 0, %s' % (vr(RT + i), vr(RT + i)))
        for i in range(4):
            L.append('v_mul_f32 %s, 0.15915494, %s' % (vr(RT + i), vr(RT + i)))
        for i in range(4):
            L.append('v_sin_f32 %s, %s' % (vr(RT + i), vr(RT + i)))
        L.append('v_rcp_f32 %s, %s' % (vr(dv), vr(dv)))
        for i in range(4):
            L.append('v_cvt_pk_bf16_f32 %s, 0, %s' % (vr(RT + i), vr(RT + i)))
        for i in range(4):
            L.append('v_mul_f32 %s, %s, %s' % (vr(RT + i), vr(RT + i), vr(dv)))
        for i in range(2):
            L.append('v_cvt_pk_bf16_f32 %s, %s, %s' % (vr(ARBFN + 2 * h + i), vr(RT + 2 * i), vr(RT + 2 * i + 1)))
        return L

    WSEQ = []
    for b in range(4):
        WSEQ += [(2, b), (1, b)]
    WSEQ += [(0, b) for b in range(4)]

    def w_mfma(k, arb):
        p, b = WSEQ[k % 12]
        slot = W + (k % 3) * 8
        return ['v_mfma_f32_16x16x16_bf16 %s, %s, %s, 0' % (vr(slot + 4 * h, 4), vr(arb + 2 * h, 2), ar(WBA + (p * 4 + b) * 2, 2)) for h in range(2)]

    def mask_ops():
        L = []
        for t in range(4):
            L.append('v_pk_lshlrev_b16 %s, %s, %s' % (vr(OH + t), vr(SH), vr(OH + t)))
        for t in range(4):
            L.append('v_pk_ashrrev_i16 %s, 15, %s op_sel_hi:[0,1]' % (vr(OH + t), vr(OH + t)))
        return L

    def and_ops(c):
        return ['v_and_b32 %s, %s, %s' % (vr(AOH + 4 * c + t), vr(AOH + 4 * c + t), vr(OH + t)) for t in range(4)]

    def src_fix(delta):
        L = ['s_add_u32 %s, %s, %d' % (sr(S_T0), sr(S_IT), delta),
             's_cmp_ge_u32 %s, %s' % (sr(S_T0), sr(S_NIT)),
             's_cselect_b32 %s, -1, 0' % sr(S_T1)]
        for t in range(4):
            L.append('v_or_b32 %s, %s, %s' % (vr(SRCP + t), sr(S_T1), vr(SRCP + t)))
        return L

    A.i('s_waitcnt lgkmcnt(0)')
    A.i('ds_read2_b32 %s, %s offset0:0 offset1:4' % (vr(DD, 2), vr(DPTR)))
    A.i('ds_read_b128 %s, %s offset:64' % (vr(OH, 4), vr(LPTR)))
    for c in range(1, 4):
        A.i('ds_read_b128 %s, %s offset:%d' % (vr(AOH + 4 * c, 4), vr(LPTR), 128 + 64 * c))
    A.i('ds_read_b128 %s, %s offset:512' % (vr(SRCP, 4), vr(LPTR)))
    A.i('s_waitcnt lgkmcnt(0)')
    for h in range(2):
        for s_ in rbf_ops(h):
            A.i(s_)
    for s_ in mask_ops():
        A.i(s_)
    for c in range(1, 4):
        for s_ in and_ops(c):
            A.i(s_)
    for k in range(3):
        for s_ in w_mfma(k, ARBFN):
            A.i(s_)
    for t in range(4):
        A.i('v_mov_b32 %s, %s' % (vr(ARBF + t), vr(ARBFN + t)))

    A.label('K2_LOOP')
    A.i('s_cmp_ge_u32 %s, %s' % (sr(S_IT), sr(S_NMAX)))
    A.branch('s_cbranch_scc1 K2_LOOP_DONE')
    A.i('s_barrier')
    A.i('s_cmp_ge_u32 %s, %s' % (sr(S_IT), sr(S_NIT)))
    A.branch('s_cbranch_scc1 K2_LOOP_NEXT')
    A.i('ds_read_b128 %s, %s offset:128' % (vr(AOH, 4), vr(LPTR)))
    A.i('ds_read2_b32 %s, %s offset0:128 offset1:132' % (vr(DD, 2), vr(DPTR)))

    units = []
    for ph in range(2):
        Tb = TA if ph == 0 else TB
        for bb in range(2):
            b = 2 * ph + bb
            units.append((Tb, 4, 3, b, 2 * b, 'vr'))
            for k in range(3):
                units.append((Tb, 4, k, b, 2 * b + 1, k))
    for b in range(4):
        units.append((TC, 2, b >> 1, b, 8 + b, 's'))

    pending = []
    side = []

    def drain(n):
        for _ in range(n):
            if side:
                A.i(side.pop(0))

    for ui, (Tb, stride, dw, b, wk, comp) in enumerate(units):
        if ui in (0, 8, 16):
            A.i('s_waitcnt vmcnt(16)')
        if ui == 1:
            A.i('s_waitcnt lgkmcnt(0)')
            for s_ in and_ops(0):
                A.i(s_)
            side += src_fix(1)
            side += rbf_ops(0)
        if ui == 8:
            side += rbf_ops(1)
        if ui == 17:
            assert not any('AOH' in p for p in pending)
            A.i('ds_read_b128 %s, %s offset:%d' % (vr(OH, 4), vr(LPTR), 512 + 64))
            for c in range(1, 4):
                A.i('ds_read_b128 %s, %s offset:%d' % (vr(AOH + 4 * c, 4), vr(LPTR), 512 + 128 + 64 * c))
        if ui == 18:
            A.i('s_waitcnt lgkmcnt(0)')
            side += mask_ops()
            for c in range(1, 4):
                side += and_ops(c)
        slot = W + (wk % 3) * 8
        pq = P + (ui % 3) * 4
        for hh in range(2):
            for r in range(4):
                j = 4 * hh + r
                tr = Tb + stride * j + dw
                if b & 1:
                    if OPT['hitrick']:
                        continue
                    A.i('v_and_b32 %s, %s, %s' % (vr(M + r), sr(S_HI), vr(tr)))
                else:
                    A.i('v_lshlrev_b32 %s, 16, %s' % (vr(M + r), vr(tr)))
            if pending:
                A.i(pending.pop(0))
            for r in range(4):
                j = 4 * hh + r
                tr = Tb + stride * j + dw
                srcv = tr if (b & 1 and OPT['hitrick']) else M + r
                A.i('v_mul_f32 %s, %s, %s' % (vr(M + r), vr(srcv), vr(slot + 4 * hh + r)))
            if pending:
                A.i(pending.pop(0))
            drain(2)
            for t in range(2):
                A.i('v_cvt_pk_bf16_f32 %s, %s, %s' % (vr(pq + 2 * hh + t), vr(M + 2 * t), vr(M + 2 * t + 1)))
            if pending:
                A.i(pending.pop(0))
        if comp == 'vr':
            for k in range(3):
                acc = ((k + 1) * 4 + b) * 4
                pending.append('v_mfma_f32_16x16x32_bf16 %s, %s, %s, %s' % (ar(acc, 4), vr(AOH + 4 * (k + 1), 4), vr(pq, 4), ar(acc, 4)))
        else:
            cidx = 0 if comp == 's' else comp + 1
            acc = (cidx * 4 + b) * 4
            pending.append('v_mfma_f32_16x16x32_bf16 %s, %s, %s, %s' % (ar(acc, 4), vr(AOH, 4), vr(pq, 4), ar(acc, 4)))
        last_use = (ui + 1 == len(units)) or units[ui + 1][4] != wk
        if last_use:
            if wk + 3 >= 12:
                while any(('v%d,' % (ARBFN + t)) in s_ for s_ in side for t in range(4)):
                    drain(1)
            pending += w_mfma(wk + 3, ARBF if wk + 3 < 12 else ARBFN)
        if ui in (7, 15, 19):
            if ui == 7:
                while any(sr(S_T1) in s_ for s_ in side):
                    drain(1)
            issue_loads({7: 0, 15: 1, 19: 2}[ui])
    A.i('ds_read_b128 %s, %s offset:1024' % (vr(SRCP, 4), vr(LPTR)))
    while pending:
        A.i(pending.pop(0))
        drain(2)
    drain(len(side))
    for t in range(4):
        A.i('v_mov_b32 %s, %s' % (vr(ARBF + t), vr(ARBFN + t)))
    A.i('v_add_u32 %s, 512, %s' % (vr(LPTR), vr(LPTR)))
    A.i('v_add_u32 %s, 512, %s' % (vr(DPTR), vr(DPTR)))
    A.label('K2_LOOP_NEXT')
    A.i('s_add_u32 %s, %s, 1' % (sr(S_IT), sr(S_IT)))
    A.branch('s_branch K2_LOOP')
    A.label('K2_LOOP_DONE')
    if OPT['stamps']:
        A.i('s_memrealtime s[14:15]')
    A.i('s_waitcnt vmcnt(0) lgkmcnt(0)')
    A.i('v_and_b32 %s, 63, v0' % vr(LANE))
    A.i('v_lshrrev_b32 %s, 4, %s' % (vr(Q), vr(LANE)))
    A.i('v_and_b32 %s, 15, v0' % vr(NN))
    A.i('s_cmp_eq_u32 %s, 0' % sr(S_MORE))
    A.branch('s_cbranch_scc1 K2_EPI')
    A.i('v_lshlrev_b32 v106, 3, v0')
    A.i('v_add_u32 v106, %d, v106' % (MISC2 + 64))
    A.i('ds_read_b64 %s, v106' % vr(SEGA, 2))
    A.i('s_waitcnt lgkmcnt(0)')
    A.i('s_barrier')
    A.branch('s_branch K2_ROUND')

    A.label('K2_EPI')
    srd(A, SRD_REC, 4, 5, N * 512)
    srd(A, SRD_X, 10, 11, N * 512)
    A.i('s_mul_i32 %s, s2, %d' % (sr(S_T0), TILE))
    A.i('s_movk_i32 %s, %d' % (sr(S_T1), TILE))
    EA, SV, U = 8, 104, 24
    for r in range(4):
        A.i('v_lshlrev_b32 %s, 5, %s' % (vr(U), vr(Q)))
        A.i('v_add_u32 %s, %d, %s' % (vr(U), 8 * r, vr(U)))
        A.i('v_add_u32 %s, %s, %s' % (vr(U), sr(S_WAVE), vr(U)))
        A.i('v_cmp_gt_u32 vcc, %s, %s' % (sr(S_T1), vr(U)))
        A.i('v_add_u32 %s, %s, %s' % (vr(U), sr(S_T0), vr(U)))
        A.i('v_lshlrev_b32 %s, 9, %s' % (vr(U), vr(U)))
        A.i('v_lshl_add_u32 %s, %s, 3, %s' % (vr(U), vr(NN), vr(U)))
        A.i('v_mov_b32 %s, 0x7f000000' % vr(U + 1))
        A.i('v_cndmask_b32 %s, %s, %s, vcc' % (vr(EA + r), vr(U + 1), vr(U)))
        for c in range(4):
            A.i('buffer_load_dwordx2 %s, %s, %s, 0 offen offset:%d' % (vr(SV + (r * 4 + c) * 2, 2), vr(EA + r), sr(SRD_REC, 4), 128 * c))
    for r in range(4):
        for c in range(4):
            z = U + ((r * 4 + c) & 1) * 12
            for b in range(4):
                A.i('v_accvgpr_read_b32 %s, %s' % (vr(z + b), ar((c * 4 + b) * 4 + r)))
            for b in range(4):
                rnd(A, z + b, z + b)
            A.i('s_waitcnt vmcnt(15)')
            sv = SV + (r * 4 + c) * 2
            for hb in range(2):
                A.i('v_lshlrev_b32 %s, 16, %s' % (vr(z + 4 + 2 * hb), vr(sv + hb)))
                A.i('v_and_b32 %s, %s, %s' % (vr(z + 5 + 2 * hb), sr(S_HI), vr(sv + hb)))
            for b in range(4):
                A.i('v_add_f32 %s, %s, %s' % (vr(z + b), vr(z + b), vr(z + 4 + b)))
            for hb in range(2):
                A.i('v_cvt_pk_bf16_f32 %s, %s, %s' % (vr(z + 8 + hb), vr(z + 2 * hb), vr(z + 2 * hb + 1)))
            A.i('buffer_store_dwordx2 %s, %s, %s, 0 offen offset:%d' % (vr(z + 8, 2), vr(EA + r), sr(SRD_X, 4), 128 * c))
    if OPT['stamps']:
        A.i('s_waitcnt vmcnt(0)')
        A.i('s_memrealtime s[16:17]')
        A.i('s_waitcnt lgkmcnt(0)')
        srd(A, 40, 12, 13, 0x100000, STAMP_OFF + 0x80000)
        A.i('s_lshl_b32 %s, s2, 3' % sr(S_T0))
        A.i('s_add_u32 %s, %s, %s' % (sr(S_T0), sr(S_T0), sr(S_WAVE)))
        A.i('s_lshl_b32 %s, %s, 6' % (sr(S_T0), sr(S_T0)))
        A.i('v_mov_b32 v9, %s' % sr(S_T0))
        for j, sreg in enumerate((96, 98, 100, 14, 16, S_NIT, S_NMAX, S_NOWN)):
            A.i('v_mov_b32 v8, %s' % sr(sreg))
            A.i('buffer_store_dword v8, v9, s[40:43], 0 offen offset:%d' % (4 * j))
    A.label('K2_END')
    A.i('s_endpgm')
    return A


HEADER = open('cdna_kernels/%s.s.ref' % NAME).read().split('; Override launch')[0]


def kd(name, nv, ns, acc):
    return '''.amdhsa_kernel %s
  .amdhsa_next_free_vgpr %d
  .amdhsa_next_free_sgpr %d
  .amdhsa_accum_offset %d
  .amdhsa_group_segment_fixed_size 0
  .amdhsa_kernarg_size 88
  .amdhsa_user_sgpr_count 2
  .amdhsa_user_sgpr_kernarg_segment_ptr 1
  .amdhsa_system_sgpr_workgroup_id_x 1
.end_amdhsa_kernel
''' % (name, nv, ns, acc)


def main():
    k1, k2 = gen_k1(), gen_k2()
    out = HEADER
    out += '; @launch kernel=painn_prep_kernel grid=(%d,1,1) block=(512,1,1) lds=%d\n' % (CH + NTW + 1, K1_LDS)
    out += '; @launch kernel=painn_main_kernel grid=(%d,1,1) block=(512,1,1) lds=%d\n' % (NTILE, K2_LDS)
    out += '.amdgcn_target "amdgcn-amd-amdhsa--gfx950"\n.text\n'
    for nm, k in (('painn_prep_kernel', k1), ('painn_main_kernel', k2)):
        out += '.globl %s\n.p2align 8\n.type %s,@function\n%s:\n' % (nm, nm, nm) + k.text()
    out += '.section .rodata,"a"\n.p2align 6\n'
    assert k1.maxv < 128 and k2.maxv < 168 and k2.maxa < 88
    out += kd('painn_prep_kernel', 128, 102, 128)
    out += '.p2align 6\n'
    out += kd('painn_main_kernel', 256, 102, 168)
    path = OPT.get('out') or 'cdna_kernels/%s.s' % NAME
    for a in sys.argv[1:]:
        if a.endswith('.s'):
            path = a
    open(path, 'w').write(out)
    sys.stderr.write('k1: %d instr, %d nop states, maxv %d maxs %d; k2: %d instr, %d nop states, maxv %d maxa %d maxs %d\n' % (
        k1.count, k1.nops, k1.maxv, k1.maxs, k2.count, k2.nops, k2.maxv, k2.maxa, k2.maxs))


main()
```
